```python
import torch

def _softmax(x, axis=-1):
    return torch.softmax(x, dim=axis)

def _gelu(x):
    return torch.nn.functional.gelu(x, approximate='tanh')

def _silu(x):
    return torch.nn.functional.silu(x)

def _sigmoid(x):
    return torch.sigmoid(x)

def _layernorm(x, axis=-1, eps=1e-05):
    m = x.mean(dim=axis, keepdim=True)
    v = x.var(dim=axis, keepdim=True, unbiased=False)
    return (x - m) / torch.sqrt(v + eps)

def _scatter_add(tgt, idx, src, axis=0):
    return tgt.clone().index_add_(axis, idx, src)

def _segment_sum(src, seg, n):
    out = torch.zeros((n,) + src.shape[1:], dtype=src.dtype)
    return out.index_add_(0, seg, src)

def _pad(x, pw):
    flat = tuple((v for pair in reversed(pw) for v in pair))
    return torch.nn.functional.pad(x, flat)
kernel_name = 'adaLN_cond__sliding_block_cached__glu_gated_geglu__decode'

def setup_inputs():

    _w = lambda a: (lambda t: t.to(torch.bfloat16) if t.is_floating_point() else t)(torch.as_tensor(a))

    def _A_setup():
        B, Sq, D = (1, 1, 512)
        Hq, Hkv, Sk, Dh = (32, 8, 65536, 128)
        assert Hq % Hkv == 0, (Hq, Hkv)
        return {'x': _w((lambda *s: torch.randn(*s, dtype=torch.bfloat16) * 0.05)(B, Sq, D)), 'k_cache': _w((lambda *s: torch.randn(*s, dtype=torch.bfloat16) * 0.8)(B, Hkv, Sk, Dh)), 'v_cache': _w((lambda *s: torch.randn(*s, dtype=torch.bfloat16) * 3.2)(B, Hkv, Sk, Dh)), 'wq': _w((lambda *s: torch.randn(*s, dtype=torch.bfloat16) * 0.8)(D, Hq * Dh) * D ** (-0.5)), 'wo': _w((lambda *s: torch.randn(*s, dtype=torch.bfloat16) * 3.2)(Hq * Dh, D) * (Hq * Dh) ** (-0.5))}
    _A_in = _A_setup()

    def _B_setup():
        B, S, Dm, Df = (1, 1, 512, 1792)
        return {'x': _w((lambda *s: torch.randn(*s, dtype=torch.bfloat16) * 0.05)(B, S, Dm)), 'w_gate': _w((lambda *s: torch.randn(*s, dtype=torch.bfloat16) * 3.2)(Dm, Df) * Dm ** (-0.5)), 'w_up': _w((lambda *s: torch.randn(*s, dtype=torch.bfloat16) * 3.2)(Dm, Df) * Dm ** (-0.5)), 'w_down': _w((lambda *s: torch.randn(*s, dtype=torch.bfloat16) * 3.2)(Df, Dm) * Df ** (-0.5))}
    _B_in = _B_setup()
    return {'A_x': _A_in['x'], 'A_k_cache': _A_in['k_cache'], 'A_v_cache': _A_in['v_cache'], 'A_wq': _A_in['wq'], 'A_wo': _A_in['wo'], 'B_x': _B_in['x'], 'B_w_gate': _B_in['w_gate'], 'B_w_up': _B_in['w_up'], 'B_w_down': _B_in['w_down'], 'c': _w((lambda *s: torch.randn(*s, dtype=torch.bfloat16) * 0.4)(1, 512) * 8.0), 'w_mod': _w((lambda *s: torch.randn(*s, dtype=torch.bfloat16) * 0.4)(512, 6 * 512) * 512 ** (-0.5) * 8.0)}

def reference(A_x, A_k_cache, A_v_cache, A_wq, A_wo, B_x, B_w_gate, B_w_up, B_w_down, c, w_mod):

    def _A_ref(x, k_cache, v_cache, wq, wo):
        B, Sq, D = x.shape
        Hq, Dh = (32, 128)
        Hkv, Sk = (k_cache.shape[1], k_cache.shape[2])
        W = min(4096, max(256, Sk // 4))
        rep = Hq // Hkv
        q = (lambda x, *d: x.permute(*d))((x @ wq).reshape(B, Sq, Hq, Dh), 0, 2, 1, 3)
        k = (lambda x, n, axis: torch.repeat_interleave(x, n, dim=axis))(k_cache[:, :, Sk - W:, :], rep, axis=1)
        v = (lambda x, n, axis: torch.repeat_interleave(x, n, dim=axis))(v_cache[:, :, Sk - W:, :], rep, axis=1)
        scores = torch.einsum('bhqd,bhkd->bhqk', q, k) * Dh ** (-0.5)
        p = _softmax(scores, axis=-1)
        o = torch.einsum('bhqk,bhkd->bhqd', p, v)
        return (lambda x, *d: x.permute(*d))(o, 0, 2, 1, 3).reshape(B, Sq, Hq * Dh) @ wo

    def _B_ref(x, w_gate, w_up, w_down):
        g = torch.einsum('bsd,df->bsf', x, w_gate)
        u = torch.einsum('bsd,df->bsf', x, w_up)
        h = _gelu(g) * u
        return torch.einsum('bsf,fd->bsd', h, w_down)
    x = A_x
    mod = (_silu(c) @ w_mod).reshape(c.shape[0], 6, 1, -1)
    sa, ca, ga, sb, cb, gb = (mod[:, 0].clone(), mod[:, 1].clone(), mod[:, 2].clone(), mod[:, 3].clone(), mod[:, 4].clone(), mod[:, 5].clone())
    h = _layernorm(x, axis=-1) * (1 + ca) + sa
    x = x + ga * _A_ref(h, A_k_cache, A_v_cache, A_wq, A_wo)
    h = _layernorm(x, axis=-1) * (1 + cb) + sb
    x = x + gb * _B_ref(h, B_w_gate, B_w_up, B_w_down)
    return x
```

```python
import re

TRANS = ("v_exp_f32","v_log_f32","v_rcp_f32","v_rsq_f32","v_sqrt_f32","v_sin_f32","v_cos_f32","v_rcp_iflag_f32")

def _regs(tok):
    tok = tok.strip()
    tok = tok.lstrip('-')
    m = re.fullmatch(r"abs\((.*)\)", tok) or re.fullmatch(r"\|(.*)\|", tok)
    if m: tok = m.group(1)
    m = re.fullmatch(r"([vsa])(\d+)", tok)
    if m: return [(m.group(1), int(m.group(2)))]
    m = re.fullmatch(r"([vsa])\[(\d+):(\d+)\]", tok)
    if m: return [(m.group(1), i) for i in range(int(m.group(2)), int(m.group(3))+1)]
    if tok == "vcc": return [('s', 106), ('s', 107)]
    if tok == "vcc_lo": return [('s', 106)]
    if tok == "vcc_hi": return [('s', 107)]
    if tok == "exec": return [('s', 126), ('s', 127)]
    if tok == "exec_lo": return [('s', 126)]
    if tok == "exec_hi": return [('s', 127)]
    if tok == "m0": return [('s', 124)]
    return []

class Ins:
    __slots__ = ("op","kind","wr","rd","srcc","passes","store_data","dpp","states","text","srcab")

def classify(text):
    t = text.split(';')[0].strip()
    parts = t.split(None, 1)
    op = parts[0]
    rest = parts[1] if len(parts) > 1 else ""
    ops = []; depth = 0; cur = ""
    for ch in rest:
        if ch in "[(": depth += 1
        if ch in "])": depth -= 1
        if ch == ',' and depth == 0:
            ops.append(cur.strip()); cur = ""
        else: cur += ch
    if cur.strip(): ops.append(cur.strip())
    mods = ""
    if ops:
        sp = ops[-1].split(None, 1)
        if len(sp) > 1 and not sp[0].endswith(':'):
            ops[-1] = sp[0]; mods = sp[1]
    I = Ins(); I.op = op; I.text = text; I.wr = set(); I.rd = set(); I.srcc = set(); I.srcab = set(); I.passes = 0
    I.store_data = set(); I.dpp = False; I.states = 1
    R = [_regs(o) for o in ops]
    base = re.sub(r"_(e32|e64|dpp|sdwa)$", "", op)
    if op == "s_nop":
        I.kind = "nop"; I.states = int(ops[0], 0) + 1; return I
    if op.startswith("v_mfma"):
        I.kind = "mfma"
        I.wr = set(R[0]); I.srcab = set(R[1]) | set(R[2]); I.srcc = set(R[3]) if len(R) > 3 else set()
        I.rd = I.srcab | I.srcc
        I.passes = 8 if "32x32x16" in op or "32x32x8" in op else (4 if ("16x16x32" in op or "16x16x16" in op) else (2 if "4x4x4" in op else 16))
        return I
    if op.startswith("v_"):
        I.kind = "valu"
        I.dpp = ("_dpp" in op) or any(k in mods for k in ("row_", "quad_perm", "wave_"))
        if base.startswith("v_cmp"):
            I.wr = set(R[0]); I.rd = set(sum(R[1:], []))
            if base.startswith("v_cmpx"): I.wr |= {('s',126),('s',127)}
        elif base in ("v_permlane32_swap_b32", "v_permlane16_swap_b32", "v_swap_b32"):
            I.wr = set(R[0]) | set(R[1]); I.rd = set(I.wr); I.kind = "valu"
        elif base in ("v_add_co_u32","v_sub_co_u32","v_subrev_co_u32","v_addc_co_u32","v_subb_co_u32","v_div_scale_f32","v_mad_u64_u32"):
            I.wr = set(R[0]) | set(R[1]); I.rd = set(sum(R[2:], []))
        else:
            I.wr = set(R[0]); I.rd = set(sum(R[1:], []))
            if base in ("v_fmac_f32","v_pk_fmac_f16","v_dot2c_f32_bf16","v_writelane_b32","v_dot2c_f32_f16") or I.dpp or "sdwa" in op:
                I.rd |= set(R[0])
        return I
    if op.startswith("s_"):
        if op in ("s_waitcnt","s_barrier","s_endpgm","s_branch","s_sleep","s_setprio") or op.startswith("s_cbranch"):
            I.kind = "sctl"; return I
        if op.startswith(("s_load","s_buffer_load","s_memtime","s_memrealtime","s_atomic")):
            I.kind = "smem"; I.wr = set(R[0]); I.rd = set(sum(R[1:], [])); return I
        I.kind = "salu"
        if op.startswith("s_cmp") or op.startswith("s_bitcmp"):
            I.rd = set(sum(R, []))
        else:
            I.wr = set(R[0]) if R else set(); I.rd = set(sum(R[1:], []))
            if "saveexec" in op: I.wr |= {('s',126),('s',127)}
        return I
    if op.startswith(("global_","buffer_","flat_")):
        I.kind = "vmem"
        if op in ("buffer_inv","buffer_wbl2"): return I
        if "store" in op:
            I.rd = set(sum(R, []))
            data = R[1] if op.startswith("global") or op.startswith("flat") else R[0]
            if "x3" in op or "x4" in op: I.store_data = set(data)
        elif "lds" in op or " lds" in (" " + mods):
            I.rd = set(sum(R, [])) | {('s',124)}
        elif "atomic" in op:
            I.rd = set(sum(R, []))
            if "sc0" in mods: I.wr = set(R[0])
        else:
            I.wr = set(R[0]); I.rd = set(sum(R[1:], []))
        return I
    if op.startswith("ds_"):
        I.kind = "lds"
        if op.startswith(("ds_write","ds_add","ds_max","ds_min")) and "rtn" not in op:
            I.rd = set(sum(R, []))
        else:
            I.wr = set(R[0]); I.rd = set(sum(R[1:], []))
        return I
    raise ValueError("unknown instruction: " + text)

def need(p, c):
    n = 0
    pv = {r for r in p.wr if r[0] != 's'}; ps = {r for r in p.wr if r[0] == 's'}
    cbase = re.sub(r"_(e32|e64|dpp|sdwa)$", "", c.op)
    pbase = re.sub(r"_(e32|e64|dpp|sdwa)$", "", p.op)
    if p.kind == "valu":
        if c.kind == "mfma" and pv & c.rd: n = max(n, 2)
        if c.kind == "valu":
            if c.dpp and pv & c.rd: n = max(n, 2)
            if cbase.startswith("v_permlane") and pv & c.rd: n = max(n, 2)
            if cbase in ("v_readlane_b32","v_readfirstlane_b32") and pv & c.rd: n = max(n, 1)
            if pbase in TRANS and cbase not in TRANS and pv & c.rd: n = max(n, 1)
            if ps & c.rd:
                n = max(n, 4 if cbase in ("v_readlane_b32","v_writelane_b32") else 2)
                if cbase == "v_div_fmas_f32": n = max(n, 4)
            if pbase.startswith("v_dot") and (pv & (c.rd | c.wr)) and cbase != pbase: n = max(n, 3)
            if ("sdwa" in p.op or "op_sel" in p.text) and pv & (c.rd | c.wr): n = max(n, 1)
            if (('s',126) in ps) : n = max(n, 5 if c.dpp else 4 if cbase.startswith(("v_readlane","v_readfirstlane","v_writelane","v_permlane")) else 0)
        if c.kind == "mfma" and ('s',126) in ps: n = max(n, 4)
        if c.kind in ("vmem","lds"):
            if ps & c.rd: n = max(n, 5)
            if pbase in TRANS and pv & c.rd: n = max(n, 1)
            if pbase.startswith("v_dot") and pv & c.rd: n = max(n, 3)
    if p.kind == "mfma":
        tab = {2:(5,4,2), 4:(8,6,0), 8:(12,10,0), 16:(20,18,0)}[p.passes]
        if c.kind == "mfma":
            if pv & c.srcab: n = max(n, tab[0])
            if pv & c.srcc:
                n = max(n, tab[2] if (c.srcc == pv and c.passes == p.passes) else tab[1])
            elif pv & c.wr: n = max(n, tab[0])
        elif c.kind in ("valu","vmem","lds"):
            if pv & (c.rd | c.wr): n = max(n, tab[0])
        if c.kind == "valu" and p.srcc & c.wr:
            n = max(n, {2:1,4:3,8:7,16:15}[p.passes])
    if p.kind == "vmem" and p.store_data and (p.store_data & c.wr):
        n = max(n, 2)
    if p.kind == "salu" and ('s',124) in ps and ('s',124) in c.rd and c.kind in ("vmem","lds"):
        n = max(n, 1)
    return n

class Asm:
    def __init__(self):
        self.lines = []
        self.hist = []
        self.nlabel = 0
    def raw(self, text):
        self.lines.append(text)
    def comment(self, text):
        self.lines.append("    ; " + text)
    def label(self, name):
        self.lines.append(name + ":")
    def newlabel(self, stem="L"):
        self.nlabel += 1
        return f"{stem}_{self.nlabel}"
    def flush_hazards(self, n=None):
        dist = 0; req = 0
        for p in reversed(self.hist):
            worst = 0
            if p.kind == "mfma": worst = {2:5,4:8,8:12,16:20}[p.passes]
            elif p.kind == "valu": worst = 5 if any(r[0]=='s' for r in p.wr) else 3
            elif p.kind == "vmem" and p.store_data: worst = 2
            elif p.kind == "salu": worst = 1 if ('s',124) in p.wr else 0
            req = max(req, worst - dist)
            dist += p.states
        if req > 0: self._nop(req)
    def _nop(self, n):
        while n > 0:
            k = min(n, 16)
            self.lines.append(f"    s_nop {k-1}")
            self.hist.append(classify(f"s_nop {k-1}"))
            n -= k
    def __call__(self, text):
        for line in text.strip().split("\n"):
            line = line.strip()
            if not line or line.startswith(";"):
                if line: self.lines.append("    " + line)
                continue
            if line.endswith(":"):
                self.lines.append(line); continue
            c = classify(line)
            dist = 0; req = 0
            for p in reversed(self.hist):
                req = max(req, need(p, c) - dist)
                dist += p.states
                if dist > 24: break
            if req > 0: self._nop(req)
            self.lines.append("    " + line)
            self.hist.append(c)
            if len(self.hist) > 40: self.hist = self.hist[-40:]
    def text(self):
        return "\n".join(self.lines) + "\n"
```

```python
import sys, os
sys.path.insert(0, os.path.dirname(os.path.abspath(__file__)))
from asmdsl import Asm

KNAME = "adaLN_cond__sliding_block_cached__glu_gated_geglu__decode_kernel"

EPOCH = 0
H1    = 0x1000
MODR  = 0x5000
H4    = 0x8000
H5    = 0x10000
H2    = 0x40000
H3ML  = 0x44000
H3    = 0x80000
DUAL  = 0x100000
STAMP = 0x400000
WS_SIZE = 0x800000

L_KT   = 0x8000
L_OB   = 0x0000
L_ML   = 0x4000
L_P0   = 0x0000
L_P1   = 0x1000
L_ST   = 0x2000
L_HH   = 0x3000
LDS_BYTES = 0x18000

SPIN_LIMIT = 200000
LOG2E = 0x3fb8aa3b

class G:
    def __init__(self, stamps=False, ffn_trigger=False):
        self.a = Asm()
        self.stamps = stamps
        self.ffn_trigger = ffn_trigger
        self.nv = 0
        self.maxv = 0

    def valloc(self, n=1, align=1):
        if n >= 2: align = max(align, 2)
        self.nv = (self.nv + align - 1)//align*align
        r = self.nv; self.nv += n
        self.maxv = max(self.maxv, self.nv)
        assert self.nv <= 256
        return r
    @staticmethod
    def vr(b, n): return f"v[{b}:{b+n-1}]"

    def stamp(self, idx):
        if not self.stamps: return
        a = self.a
        a(f"""s_memrealtime s[60:61]
              s_waitcnt lgkmcnt(0)
              v_mov_b32 v{self.vStampT}, s60
              buffer_store_dword v{self.vStampT}, v{self.vStampA}, s[44:47], 0 offen offset:{idx*4}""")

    def unpack(self, dst, src, n):
        for i in range(n):
            self.a(f"v_lshlrev_b32 v{dst+2*i}, 16, v{src+i}")
            self.a(f"v_and_b32 v{dst+2*i+1}, 0xffff0000, v{src+i}")
    def pack(self, dst, src, n):
        for i in range(n):
            self.a(f"v_cvt_pk_bf16_f32 v{dst+i}, v{src+2*i}, v{src+2*i+1}")
    def round_bf16(self, regs, tmp):
        b, n = regs
        self.pack(tmp, b, n//2); self.unpack(b, tmp, n//2)
    def round1(self, r):
        self.a(f"v_cvt_pk_bf16_f32 v{r}, v{r}, v{r}")
        self.a(f"v_and_b32 v{r}, 0xffff0000, v{r}")
    def dpp_sum(self, regs, rors, op="v_add_f32"):
        for ro in rors:
            for r in regs:
                self.a(f"{op}_dpp v{r}, v{r}, v{r} row_ror:{ro} row_mask:0xf bank_mask:0xf")
    def xrow_all(self, r, t, op="v_add_f32"):
        a = self.a
        a(f"v_mov_b32 v{t}, v{r}")
        a(f"v_permlane16_swap_b32 v{r}, v{t}")
        a(f"{op} v{r}, v{r}, v{t}")
        a(f"v_mov_b32 v{t}, v{r}")
        a(f"v_permlane32_swap_b32 v{r}, v{t}")
        a(f"{op} v{r}, v{r}, v{t}")
    def xrow_scatter4(self, b):
        a = self.a
        a(f"v_permlane16_swap_b32 v{b}, v{b+1}")
        a(f"v_permlane16_swap_b32 v{b+2}, v{b+3}")
        a(f"v_add_f32 v{b}, v{b}, v{b+1}")
        a(f"v_add_f32 v{b+2}, v{b+2}, v{b+3}")
        a(f"v_permlane32_swap_b32 v{b}, v{b+2}")
        a(f"v_add_f32 v{b}, v{b}, v{b+2}")
    def wave_sum(self, r, t):
        self.dpp_sum([r], [8,4,2,1]); self.xrow_all(r, t)

    def tile_perm(self, L, F, waits=None):
        a = self.a
        for d in range(4):
            if waits: waits(d)
            for x in range(4):
                a(f"v_perm_b32 v{F+(2*x)*4+d}, v{L+(2*d+1)*4+x}, v{L+(2*d)*4+x}, s50")
                a(f"v_perm_b32 v{F+(2*x+1)*4+d}, v{L+(2*d+1)*4+x}, v{L+(2*d)*4+x}, s51")
    def tile_mfma(self, A, F, D):
        for c in range(8):
            self.a(f"v_mfma_f32_16x16x32_bf16 {self.vr(D+4*c,4)}, {self.vr(A,4)}, {self.vr(F+4*c,4)}, 0")
    def tile_write(self, D, T, vAddr, ldsbase):
        a = self.a
        for c in range(8):
            a(f"v_cndmask_b32 v{T+c}, v{D+4*c}, v{D+4*c+1}, s[52:53]")
        a("s_mov_b64 exec, 0xffff")
        a(f"ds_write_b128 v{vAddr}, {self.vr(T,4)} offset:{ldsbase}")
        a(f"ds_write_b128 v{vAddr}, {self.vr(T+4,4)} offset:{ldsbase+16}")
        a("s_mov_b64 exec, -1")
    def tile_reduce16(self, R, vAddr, ldsbase):
        a = self.a
        for k in range(4):
            a(f"ds_read_b128 {self.vr(R+4*k,4)}, v{vAddr} offset:{ldsbase+256*k}")
        a("s_waitcnt lgkmcnt(2)")
        a(f"v_pk_add_f32 {self.vr(R,2)}, {self.vr(R,2)}, {self.vr(R+4,2)}")
        a(f"v_pk_add_f32 {self.vr(R+2,2)}, {self.vr(R+2,2)}, {self.vr(R+6,2)}")
        a("s_waitcnt lgkmcnt(0)")
        a(f"v_pk_add_f32 {self.vr(R+8,2)}, {self.vr(R+8,2)}, {self.vr(R+12,2)}")
        a(f"v_pk_add_f32 {self.vr(R+10,2)}, {self.vr(R+10,2)}, {self.vr(R+14,2)}")
        a(f"v_pk_add_f32 {self.vr(R,2)}, {self.vr(R,2)}, {self.vr(R+8,2)}")
        a(f"v_pk_add_f32 {self.vr(R+2,2)}, {self.vr(R+2,2)}, {self.vr(R+10,2)}")
        self.xrow_scatter4(R)

    def poll(self, loads, t0, t1, acc, dual=False):
        a = self.a
        L = a.newlabel("L_poll")
        a.flush_hazards()
        if dual: a("s_mov_b32 s58, 0")
        a.label(L)
        so = "s58" if dual else "0"
        for (d, va, off) in loads:
            a(f"buffer_load_dwordx4 {self.vr(d,4)}, v{va}, s[44:47], {so} offen offset:{off} sc1")
        a("s_add_u32 s57, s57, 1")
        if dual:
            a("s_and_b32 s59, s57, 3")
            a("s_cmp_eq_u32 s59, 3")
            a(f"s_cselect_b32 s58, {DUAL}, 0")
        a(f"s_cmp_gt_u32 s57, {SPIN_LIMIT}")
        a("s_cbranch_scc1 L_end")
        n = len(loads)
        for i, (d, va, off) in enumerate(loads):
            a(f"s_waitcnt vmcnt({n-1-i})")
            a(f"v_perm_b32 v{t0}, v{d+1}, v{d}, s54")
            a(f"v_perm_b32 v{t1}, v{d+3}, v{d+2}, s55")
            if i == 0:
                a(f"v_bitop3_b32 v{acc}, v{t0}, v{t1}, v{self.vT} bitop3:0x56")
            else:
                a(f"v_bitop3_b32 v{t0}, v{t0}, v{t1}, v{self.vT} bitop3:0x56")
                a(f"v_or_b32 v{acc}, v{acc}, v{t0}")
        a(f"v_cmp_ne_u32 vcc, 0, v{acc}")
        a(f"s_cbranch_vccnz {L}")

    def publish_word(self, val, vaddr, off, dual=False):
        a = self.a
        a(f"v_and_or_b32 v{val}, v{val}, s56, v{self.vTB}")
        if dual:
            a(f"buffer_store_dword v{val}, v{vaddr}, s[44:47], 0 offen offset:{off}")
            a(f"buffer_store_dword v{val}, v{vaddr}, s[44:47], s49 offen offset:{off} sc1")
        else:
            a(f"buffer_store_dword v{val}, v{vaddr}, s[44:47], 0 offen offset:{off} sc1")

    def tag_ready(self):
        a = self.a
        vT, vTB = self.vT, self.vTB
        a(f"v_and_b32 v{vTB}, 0x7f7f7f7f, v{vT}")
        a(f"v_add_u32 v{vTB}, 0x4f2b1d35, v{vTB}")
        a(f"v_and_b32 v{vT}, 0x80808080, v{vT}")
        a(f"v_xor_b32 v{vT}, v{vT}, v{vTB}")
        a(f"v_lshlrev_b32 v{vTB}, 3, v{self.vKB}")
        a(f"v_lshrrev_b32 v{vTB}, v{vTB}, v{vT}")
        a(f"v_and_b32 v{vTB}, 0xff, v{vTB}")

    def ln_stats_full(self, X8, t, t2, mean_b, rsd):
        a = self.a
        a(f"v_add_f32 v{t}, v{X8}, v{X8+1}")
        for i in range(2, 8): a(f"v_add_f32 v{t}, v{t}, v{X8+i}")
        self.wave_sum(t, t2)
        a(f"v_mul_f32 v{mean_b}, 0x3b000000, v{t}")
        for i in range(8): a(f"v_sub_f32 v{X8+i}, v{X8+i}, v{mean_b}")
        a(f"v_mul_f32 v{t}, v{X8}, v{X8}")
        for i in range(1, 8): a(f"v_fmac_f32 v{t}, v{X8+i}, v{X8+i}")
        self.wave_sum(t, t2)
        a(f"v_mul_f32 v{t}, 0x3b000000, v{t}")
        self.ln_finish(t, mean_b, rsd)
    def ln_finish(self, var, mean_b, rsd):
        a = self.a
        self.round1(mean_b)
        self.round1(var)
        a(f"v_add_f32 v{var}, 0x3727c5ac, v{var}")
        self.round1(var)
        a(f"v_sqrt_f32 v{var}, v{var}")
        self.round1(var)
        a(f"v_rcp_f32 v{rsd}, v{var}")

    def silu8(self, C4, X8, T8, A4):
        a = self.a
        self.unpack(X8, C4, 4)
        for i in range(8): a(f"v_mul_f32 v{T8+i}, 0xbfb8aa3b, v{X8+i}")
        for i in range(8): a(f"v_exp_f32 v{T8+i}, v{T8+i}")
        for i in range(8): a(f"v_add_f32 v{T8+i}, 1.0, v{T8+i}")
        for i in range(8): a(f"v_rcp_f32 v{T8+i}, v{T8+i}")
        for i in range(8): a(f"v_mul_f32 v{X8+i}, v{X8+i}, v{T8+i}")
        self.pack(A4, X8, 4)

    def build(self):
        a = self.a
        V = self.valloc
        V(1)
        self.vL = V(); self.vKB = V(); self.vJ = V(); self.vT = V(); self.vTB = V()
        self.vStampT = V(); self.vStampA = V()
        vL, vKB, vJ, vT = self.vL, self.vKB, self.vJ, self.vT
        vZ = V()
        common_nv = self.nv
        a(f"""
        s_cmp_ge_u32 s2, 256
        s_cbranch_scc1 L_end
        s_load_dwordx16 s[16:31], s[0:1], 0
        s_load_dwordx8 s[32:39], s[0:1], 64
        s_load_dwordx4 s[40:43], s[0:1], 96
        v_lshrrev_b32 v{vT}, 6, v0
        v_and_b32 v{vL}, 63, v0
        v_readfirstlane_b32 s3, v{vT}
        v_lshrrev_b32 v{vKB}, 4, v{vL}
        v_and_b32 v{vJ}, 15, v{vL}
        v_mov_b32 v{vZ}, 0
        s_and_b32 s4, s2, 7
        s_lshr_b32 s5, s2, 3
        s_mov_b32 s46, {WS_SIZE}
        s_mov_b32 s47, 0x00020000
        s_mov_b32 s49, {DUAL}
        s_mov_b32 s50, 0x05040100
        s_mov_b32 s51, 0x07060302
        s_mov_b32 s52, 0xff00ff00
        s_mov_b32 s53, 0xff00ff00
        s_mov_b32 s54, 0x0c0c0400
        s_mov_b32 s55, 0x04000c0c
        s_mov_b32 s56, 0xffffff00
        s_mov_b32 s57, 0
        s_mov_b32 s58, 0
        s_waitcnt lgkmcnt(0)
        s_mov_b32 s44, s42
        s_mov_b32 s45, s43
        buffer_load_dword v{vT}, v{vZ}, s[44:47], 0 offen offset:{EPOCH} sc1
        """)
        if self.stamps:
            a(f"""s_lshl_b32 s6, s2, 3
                  s_add_u32 s6, s6, s3
                  s_lshl_b32 s6, s6, 7
                  s_add_u32 s6, s6, {STAMP}
                  v_mov_b32 v{self.vStampA}, s6""")
            self.stamp(0)
        a("""
        s_cmp_ge_u32 s5, 16
        s_cbranch_scc1 L_roleA
        s_cmp_ge_u32 s5, 8
        s_cbranch_scc1 L_roleWF
        """)
        self.nstore0 = 1 if self.stamps else 0
        self.role_wq(); self.nv = common_nv
        self.role_wf(); self.nv = common_nv
        self.role_a(); self.nv = common_nv
        a.label("L_end")
        a("s_endpgm")

    def w_common(self):
        a = self.a; V = self.valloc
        self.vJR = V(); self.vJC = V(); self.vRB = V(); self.vAB = V(); self.vWA = V(); self.vRA = V(); self.vPA = V()
        vJ, vKB, vL = self.vJ, self.vKB, self.vL
        a(f"""
        v_lshrrev_b32 v{self.vJR}, 3, v{vJ}               ; jr
        v_and_b32 v{self.vJC}, 7, v{vJ}                   ; jc
        v_lshl_add_u32 v{self.vRB}, v{self.vJR}, 2, v{vKB}
        v_and_b32 v{self.vAB}, 1, v{vJ}
        v_lshl_add_u32 v{self.vAB}, v{self.vAB}, 2, v{vKB}
        s_lshl_b32 s6, s3, 9
        v_lshlrev_b32 v{self.vWA}, 8, v{self.vJR}
        v_lshl_add_u32 v{self.vWA}, v{self.vJC}, 5, v{self.vWA}
        v_add_u32 v{self.vWA}, s6, v{self.vWA}
        v_lshlrev_b32 v{self.vRA}, 10, v{vKB}
        v_lshl_add_u32 v{self.vRA}, v{vJ}, 4, v{self.vRA}
        v_lshlrev_b32 v{self.vPA}, 2, v{vKB}
        v_lshl_add_u32 v{self.vPA}, v{vJ}, 4, v{self.vPA}
        """)

    def tile_loads(self, L, vOff, sbase, rowoffs):
        a = self.a
        prev = 0
        for e in sorted(range(8), key=lambda e: rowoffs[e]):
            d = rowoffs[e] - prev
            if -4096 <= rowoffs[e] - prev <= 4095:
                a(f"global_load_dwordx4 {self.vr(L+4*e,4)}, v{vOff}, {sbase} offset:{d} nt")
            else:
                a(f"v_add_u32 v{vOff}, {d}, v{vOff}")
                prev = rowoffs[e]
                a(f"global_load_dwordx4 {self.vr(L+4*e,4)}, v{vOff}, {sbase} nt")

    def role_wq(self):
        a = self.a; V = self.valloc
        vL, vKB, vJ = self.vL, self.vKB, self.vJ
        self.w_common()
        L = V(32, 4); F = V(32, 4); D = V(32, 4); A4 = V(4, 4)
        XA = V(4, 4); XF = V(4, 4); X8 = V(8, 2); Z8 = V(8, 2); P = V(24, 4); T8 = V(8, 4)
        vOff = V(); t0 = V(); t1 = V(); acc = V(); vMean = V(); vRsd = V(); vH = V(); vH2 = V()
        a(f"""
        v_lshlrev_b32 v{t0}, 4, v{vL}
        global_load_dwordx4 {self.vr(XF,4)}, v{t0}, s[16:17]
        s_lshl_b32 s6, s3, 7
        v_lshlrev_b32 v{t1}, 4, v{self.vAB}
        v_add_u32 v{t1}, s6, v{t1}
        global_load_dwordx4 {self.vr(XA,4)}, v{t1}, s[16:17]
        s_lshl_b32 s6, s3, 19
        s_lshl_b32 s7, s4, 10
        s_add_u32 s6, s6, s7
        s_lshl_b32 s7, s5, 7
        s_add_u32 s6, s6, s7
        v_lshlrev_b32 v{vOff}, 16, v{self.vRB}
        v_lshl_add_u32 v{vOff}, v{self.vJC}, 4, v{vOff}
        v_add_u32 v{vOff}, s6, v{vOff}
        """)
        self.tile_loads(L, vOff, "s[22:23]", [e*8192 for e in range(8)])
        a("s_waitcnt vmcnt(8)")
        self.tag_ready()
        self.unpack(X8, XF, 4)
        self.ln_stats_full(X8, t0, t1, vMean, vRsd)
        self.unpack(Z8, XA, 4)
        for i in range(8): a(f"v_sub_f32 v{Z8+i}, v{Z8+i}, v{vMean}")
        self.round_bf16((Z8, 8), XA)
        for i in range(8): a(f"v_mul_f32 v{Z8+i}, v{Z8+i}, v{vRsd}")
        self.round_bf16((Z8, 8), XA)
        a(f"""
        v_lshrrev_b32 v{vH}, 1, v{vJ}
        v_lshlrev_b32 v{vH}, 11, v{vH}
        v_lshl_add_u32 v{vH}, v{self.vAB}, 5, v{vH}
        s_lshl_b32 s6, s3, 8
        s_add_u32 s6, s6, {H1}
        v_add_u32 v{vH}, s6, v{vH}
        """)
        self.tile_perm(L, F, waits=lambda d: a(f"s_waitcnt vmcnt({6-2*d})"))
        self.stamp(1)
        self.poll([(P, vH, 0), (P+4, vH, 16)], t0, t1, acc)
        self.stamp(2)
        self.dpp_sum(range(P, P+8), [8, 4])
        self.pack(XA, P, 4)
        for i in range(4):
            a(f"v_mov_b32_dpp v{XF+i}, v{XA+i} quad_perm:[2,3,0,1] row_mask:0xf bank_mask:0xf")
        self.unpack(X8, XF, 4)
        for i in range(8): a(f"v_add_f32 v{X8+i}, 1.0, v{X8+i}")
        self.round_bf16((X8, 8), XF)
        for i in range(8): a(f"v_mul_f32 v{X8+i}, v{X8+i}, v{Z8+i}")
        self.round_bf16((X8, 8), XF)
        self.unpack(P, XA, 4)
        for i in range(8): a(f"v_add_f32 v{X8+i}, v{X8+i}, v{P+i}")
        self.pack(A4, X8, 4)
        self.tile_mfma(A4, F, D)
        self.tile_write(D, T8, self.vWA, L_P0)
        a("s_waitcnt lgkmcnt(0)")
        a("s_barrier")
        Lq = a.newlabel("L_wq_skip")
        a(f"s_cmp_lg_u32 s3, 0\ns_cbranch_scc1 {Lq}")
        self.tile_reduce16(P, self.vRA, L_P0)
        self.round1(P)
        a(f"""s_lshl_b32 s6, s4, 11
              s_lshl_b32 s7, s5, 8
              s_add_u32 s6, s6, s7
              s_add_u32 s6, s6, {H2}
              v_add_u32 v{t0}, s6, v{self.vPA}""")
        self.publish_word(P, t0, 0, dual=True)
        self.stamp(3)
        a.flush_hazards()
        a.label(Lq)
        a(f"""
        s_lshl_b32 s6, s4, 19
        s_lshl_b32 s7, s3, 16
        s_add_u32 s6, s6, s7
        s_lshl_b32 s7, s5, 7
        s_add_u32 s6, s6, s7
        v_lshlrev_b32 v{vOff}, 15, v{self.vJR}
        v_lshl_add_u32 v{vOff}, v{vKB}, 11, v{vOff}
        v_lshl_add_u32 v{vOff}, v{self.vJC}, 4, v{vOff}
        v_add_u32 v{vOff}, s6, v{vOff}
        """)
        self.tile_loads(L, vOff, "s[24:25]", [(8*(e&3) + (e>>2))*1024 for e in range(8)])
        a(f"""
        v_lshrrev_b32 v{vH}, 1, v{vJ}
        v_lshlrev_b32 v{vH2}, 5, v{vH}
        v_lshlrev_b32 v{vH}, 12, v{vH}
        v_lshl_add_u32 v{vH}, v{self.vAB}, 5, v{vH}
        s_lshl_b32 s6, s4, 15
        s_lshl_b32 s7, s3, 8
        s_add_u32 s6, s6, s7
        s_add_u32 s6, s6, {H3}
        v_add_u32 v{vH}, s6, v{vH}
        s_lshl_b32 s6, s4, 10
        s_lshr_b32 s7, s3, 1
        s_lshl_b32 s7, s7, 8
        s_add_u32 s6, s6, s7
        s_add_u32 s6, s6, {H3ML}
        v_add_u32 v{vH2}, s6, v{vH2}
        """)
        a("s_waitcnt vmcnt(0)")
        self.tile_perm(L, F)
        self.stamp(4)
        OA, OB, MA, MB = P, P+8, P+16, P+20
        self.poll([(MA, vH2, 0), (MB, vH2, 16), (OA, vH, 0), (OA+4, vH, 16), (OB, vH, 2048), (OB+4, vH, 2064)], t0, t1, acc, dual=True)
        self.stamp(5)
        a(f"""
        v_and_b32 v{MA}, 0xffff0000, v{MA}
        v_and_b32 v{MB}, 0xffff0000, v{MB}
        v_max_f32 v{t0}, v{MA}, v{MB}
        """)
        self.dpp_sum([t0], [8,4,2], op="v_max_f32")
        a(f"""
        v_sub_f32 v{MA}, v{MA}, v{t0}
        v_sub_f32 v{MB}, v{MB}, v{t0}
        v_mul_f32 v{MA}, {LOG2E}, v{MA}
        v_mul_f32 v{MB}, {LOG2E}, v{MB}
        v_exp_f32 v{MA}, v{MA}
        v_exp_f32 v{MB}, v{MB}
        v_mul_f32 v{t1}, v{MA}, v{MA+1}
        v_fmac_f32 v{t1}, v{MB}, v{MB+1}
        """)
        for i in range(8): a(f"v_mul_f32 v{OA+i}, v{MA}, v{OA+i}")
        for i in range(8): a(f"v_fmac_f32 v{OA+i}, v{MB}, v{OB+i}")
        self.dpp_sum([t1] + list(range(OA, OA+8)), [8,4,2])
        a(f"v_rcp_f32 v{t1}, v{t1}")
        for i in range(8): a(f"v_mul_f32 v{OA+i}, v{t1}, v{OA+i}")
        self.pack(A4, OA, 4)
        self.tile_mfma(A4, F, D)
        self.tile_write(D, T8, self.vWA, L_P1)
        a("s_waitcnt lgkmcnt(0)")
        a("s_barrier")
        a("s_cmp_lg_u32 s3, 0\ns_cbranch_scc1 L_end")
        self.tile_reduce16(P, self.vRA, L_P1)
        a(f"""s_lshl_b32 s6, s4, 11
              s_lshl_b32 s7, s5, 8
              s_add_u32 s6, s6, s7
              s_add_u32 s6, s6, {H4}
              v_add_u32 v{t0}, s6, v{self.vPA}""")
        self.publish_word(P, t0, 0)
        self.stamp(6)
        a("s_endpgm")

    def role_wf(self):
        a = self.a; V = self.valloc
        vL, vKB, vJ = self.vL, self.vKB, self.vJ
        a.label("L_roleWF")
        self.w_common()
        L = V(32, 4); F = V(32, 4); D = V(32, 4); A4 = V(4, 4)
        LD = V(32, 4); FD = V(32, 4)
        C4 = V(4, 4); X8 = V(8, 2); T8 = V(8, 4); P = V(16, 4); GA = V(8, 4); SB = V(8, 4); CB = V(8, 4); XA = V(4, 4)
        vOff = V(); t0 = V(); t1 = V(); acc = V(); vMean = V(); vRsd = V(); vH = V(); vAd = V(2, 2); vM2 = V()
        a(f"""
        s_sub_u32 s7, s5, 8
        s_lshl_b32 s7, s7, 3
        s_add_u32 s8, s7, s4            ; s8 = f
        s_cmp_ge_u32 s8, 32
        s_cbranch_scc1 L_modrest
        """)
        Ls1done = a.newlabel("L_s1_bar")
        a(f"""
        s_cmp_ge_u32 s3, 4
        s_cbranch_scc1 {Ls1done}_idle
        s_lshr_b32 s9, s8, 3            ; kp
        s_lshl_b32 s9, s9, 7            ; kp*128
        s_lshr_b32 s10, s3, 1
        s_lshl_b32 s10, s10, 6
        s_add_u32 s9, s9, s10           ; R0
        s_lshl_b32 s10, s9, 1
        v_lshlrev_b32 v{t0}, 4, v{self.vAB}
        v_add_u32 v{t0}, s10, v{t0}
        global_load_dwordx4 {self.vr(C4,4)}, v{t0}, s[34:35]
        s_mul_i32 s10, s9, 6144
        s_and_b32 s11, s3, 1
        s_lshl_b32 s11, s11, 10
        s_add_u32 s10, s10, s11
        s_lshl_b32 s11, s4, 7
        s_add_u32 s10, s10, s11
        v_mul_u32_u24 v{vOff}, {8*6144}, v{self.vRB}
        v_lshl_add_u32 v{vOff}, v{self.vJC}, 4, v{vOff}
        v_add_u32 v{vOff}, s10, v{vOff}
        """)
        self.tile_loads(L, vOff, "s[36:37]", [e*6144 for e in range(8)])
        a("s_waitcnt vmcnt(8)")
        self.tag_ready()
        self.silu8(C4, X8, T8, A4)
        self.tile_perm(L, F, waits=lambda d: a(f"s_waitcnt vmcnt({6-2*d})"))
        self.stamp(1)
        self.tile_mfma(A4, F, D)
        a(f"""
        s_and_b32 s10, s3, 1
        s_lshl_b32 s10, s10, 10
        s_lshr_b32 s11, s3, 1
        s_lshl_b32 s11, s11, 9
        s_add_u32 s10, s10, s11
        v_lshlrev_b32 v{t0}, 8, v{self.vJR}
        v_lshl_add_u32 v{t0}, v{self.vJC}, 5, v{t0}
        v_add_u32 v{t0}, s10, v{t0}
        """)
        self.tile_write(D, T8, t0, L_P0)
        a("s_waitcnt lgkmcnt(0)")
        a("s_barrier")
        a(f"s_cmp_ge_u32 s3, 2\ns_cbranch_scc1 L_ffn")
        a(f"""
        s_lshl_b32 s10, s3, 10
        v_lshlrev_b32 v{t0}, 8, v{vKB}
        v_lshl_add_u32 v{t0}, v{vJ}, 4, v{t0}
        v_add_u32 v{t0}, s10, v{t0}
        ds_read_b128 {self.vr(P,4)}, v{t0} offset:{L_P0}
        s_lshr_b32 s9, s8, 3
        s_lshl_b32 s9, s9, 1
        s_add_u32 s9, s9, s3
        s_lshl_b32 s9, s9, 11
        s_lshl_b32 s10, s4, 8
        s_add_u32 s9, s9, s10
        s_add_u32 s9, s9, {H1}
        v_add_u32 v{t1}, s9, v{self.vPA}
        s_waitcnt lgkmcnt(0)
        """)
        self.xrow_scatter4(P)
        self.publish_word(P, t1, 0)
        self.stamp(2)
        a("s_branch L_ffn")
        a.label(f"{Ls1done}_idle")
        a("s_waitcnt vmcnt(0)")
        self.tag_ready()
        a("s_barrier")
        a("s_branch L_ffn")
        a.label("L_modrest")
        a(f"""
        s_lshl_b32 s10, s3, 7
        v_lshlrev_b32 v{t0}, 4, v{self.vAB}
        v_add_u32 v{t0}, s10, v{t0}
        global_load_dwordx4 {self.vr(C4,4)}, v{t0}, s[34:35]
        s_mul_i32 s10, s3, {64*6144}
        s_sub_u32 s9, s8, 32
        s_lshl_b32 s11, s9, 7
        s_add_u32 s10, s10, s11
        s_add_u32 s10, s10, 2048
        v_mul_u32_u24 v{vOff}, {8*6144}, v{self.vRB}
        v_lshl_add_u32 v{vOff}, v{self.vJC}, 4, v{vOff}
        v_add_u32 v{vOff}, s10, v{vOff}
        """)
        self.tile_loads(L, vOff, "s[36:37]", [e*6144 for e in range(8)])
        a("s_waitcnt vmcnt(8)")
        self.tag_ready()
        self.silu8(C4, X8, T8, A4)
        self.tile_perm(L, F, waits=lambda d: a(f"s_waitcnt vmcnt({6-2*d})"))
        self.stamp(1)
        self.tile_mfma(A4, F, D)
        self.tile_write(D, T8, self.vWA, L_P0)
        a("s_waitcnt lgkmcnt(0)")
        a("s_barrier")
        a(f"s_cmp_lg_u32 s3, 0\ns_cbranch_scc1 L_ffn")
        self.tile_reduce16(P, self.vRA, L_P0)
        self.round1(P)
        a(f"""s_lshl_b32 s9, s9, 8
              s_add_u32 s9, s9, {MODR}
              v_add_u32 v{t0}, s9, v{self.vPA}""")
        self.publish_word(P, t0, 0)
        self.stamp(2)
        a.flush_hazards()
        a.label("L_ffn")
        a(f"""
        s_cmp_eq_u32 s4, 7
        s_cbranch_scc1 L_end
        s_lshl_b32 s9, s4, 3
        s_add_u32 s9, s9, s5
        s_sub_u32 s9, s9, 8             ; s9 = phi
        """)
        if self.ffn_trigger:
            a(f"""
            s_lshl_b32 s6, s4, 11
            s_sub_u32 s7, s5, 8
            s_lshl_b32 s7, s7, 8
            s_add_u32 s6, s6, s7
            s_add_u32 s6, s6, {H2}
            v_mov_b32 v{vH}, s6
            """)
            self.poll([(P, vH, 0)], t0, t1, acc, dual=True)
        a(f"""
        s_lshl_b32 s6, s3, 7
        v_lshlrev_b32 v{t1}, 4, v{self.vAB}
        v_add_u32 v{t1}, s6, v{t1}
        global_load_dwordx4 {self.vr(XA,4)}, v{t1}, s[16:17]
        s_mul_i32 s10, s3, {64*3584}
        s_lshl_b32 s11, s9, 6
        s_add_u32 s10, s10, s11
        v_mul_u32_u24 v{vOff}, {8*3584}, v{self.vRB}
        v_and_b32 v{t0}, 3, v{self.vJC}
        v_lshl_add_u32 v{vOff}, v{t0}, 4, v{vOff}
        v_add_u32 v{vOff}, s10, v{vOff}
        v_cmp_gt_u32 vcc, 4, v{self.vJC}
        v_mov_b32 v{t0}, s30
        v_mov_b32 v{t1}, s28
        v_cndmask_b32 v{vAd}, v{t0}, v{t1}, vcc
        v_mov_b32 v{t0}, s31
        v_mov_b32 v{t1}, s29
        v_cndmask_b32 v{vAd+1}, v{t0}, v{t1}, vcc
        v_add_co_u32 v{vAd}, vcc, v{vAd}, v{vOff}
        v_addc_co_u32 v{vAd+1}, vcc, 0, v{vAd+1}, vcc
        """)
        for e in range(8):
            a(f"global_load_dwordx4 {self.vr(L+4*e,4)}, {self.vr(vAd,2)}, off offset:{3584*(e&1)} nt")
            if e & 1 and e < 7:
                a(f"v_add_co_u32 v{vAd}, vcc, {2*3584}, v{vAd}")
                a(f"v_addc_co_u32 v{vAd+1}, vcc, 0, v{vAd+1}, vcc")
        Lnd = a.newlabel("L_nodown")
        a(f"""
        s_cmp_ge_u32 s3, 4
        s_cbranch_scc1 {Lnd}
        s_lshl_b32 s10, s9, 15
        s_lshl_b32 s11, s3, 8
        s_add_u32 s10, s10, s11
        s_add_u32 s10, s10, 4096
        v_lshlrev_b32 v{vOff}, 13, v{vKB}
        v_lshl_add_u32 v{vOff}, v{vJ}, 4, v{vOff}
        v_add_u32 v{vOff}, s10, v{vOff}
        """)
        for e in range(8):
            a(f"global_load_dwordx4 {self.vr(LD+4*e,4)}, v{vOff}, s[32:33] offset:{(e-4)*1024} nt")
        a("s_waitcnt vmcnt(0)")
        self.tile_perm(LD, FD)
        a.flush_hazards()
        a.label(Lnd)
        a("s_waitcnt vmcnt(0)")
        self.tile_perm(L, F)
        self.stamp(3)
        a(f"""
        s_lshl_b32 s6, s3, 8
        s_add_u32 s6, s6, {MODR}
        v_lshlrev_b32 v{vH}, 5, v{self.vAB}
        v_add_u32 v{vH}, s6, v{vH}
        v_add_u32 v{vOff}, 4096, v{vH}
        """)
        self.poll([(GA, vH, 0), (GA+4, vH, 16), (SB, vH, 2048), (SB+4, vH, 2064), (CB, vOff, 0), (CB+4, vOff, 16)], t0, t1, acc)
        for i in range(8):
            a(f"v_and_b32 v{GA+i}, 0xffff0000, v{GA+i}")
            a(f"v_and_b32 v{SB+i}, 0xffff0000, v{SB+i}")
            a(f"v_and_b32 v{CB+i}, 0xffff0000, v{CB+i}")
        for i in range(8): a(f"v_add_f32 v{CB+i}, 1.0, v{CB+i}")
        self.round_bf16((CB, 8), T8)
        self.unpack(X8, XA, 4)
        a(f"""
        v_lshrrev_b32 v{vH}, 1, v{vJ}
        v_lshlrev_b32 v{vH}, 11, v{vH}
        v_lshl_add_u32 v{vH}, v{self.vAB}, 5, v{vH}
        s_lshl_b32 s6, s3, 8
        s_add_u32 s6, s6, {H4}
        v_add_u32 v{vH}, s6, v{vH}
        s_lshl_b32 s6, s3, 3
        v_mov_b32 v{vOff}, s6
        """)
        self.stamp(4)
        self.poll([(P, vH, 0), (P+4, vH, 16)], t0, t1, acc)
        self.stamp(5)
        self.dpp_sum(range(P, P+8), [8, 4, 2])
        self.round_bf16((P, 8), T8)
        for i in range(8): a(f"v_mul_f32 v{P+i}, v{P+i}, v{GA+i}")
        self.round_bf16((P, 8), T8)
        for i in range(8): a(f"v_add_f32 v{X8+i}, v{X8+i}, v{P+i}")
        self.round_bf16((X8, 8), T8)
        a(f"v_add_f32 v{t0}, v{X8}, v{X8+1}")
        for i in range(2, 8): a(f"v_add_f32 v{t0}, v{t0}, v{X8+i}")
        a(f"v_add_f32_dpp v{t0}, v{t0}, v{t0} quad_perm:[1,0,3,2] row_mask:0xf bank_mask:0xf")
        self.xrow_all(t0, t1)
        a(f"v_mul_f32 v{T8}, 0x3c800000, v{t0}")
        for i in range(8): a(f"v_sub_f32 v{P+i}, v{X8+i}, v{T8}")
        a(f"v_mul_f32 v{T8+1}, v{P}, v{P}")
        for i in range(1, 8): a(f"v_fmac_f32 v{T8+1}, v{P+i}, v{P+i}")
        a(f"v_add_f32_dpp v{T8+1}, v{T8+1}, v{T8+1} quad_perm:[1,0,3,2] row_mask:0xf bank_mask:0xf")
        self.xrow_all(T8+1, t1)
        a(f"""
        ds_write_b64 v{vOff}, {self.vr(T8,2)} offset:{L_ST}
        s_waitcnt lgkmcnt(0)
        s_barrier
        v_mov_b32 v{t0}, 0
        ds_read_b128 {self.vr(P,4)}, v{t0} offset:{L_ST}
        ds_read_b128 {self.vr(P+4,4)}, v{t0} offset:{L_ST+16}
        ds_read_b128 {self.vr(P+8,4)}, v{t0} offset:{L_ST+32}
        ds_read_b128 {self.vr(P+12,4)}, v{t0} offset:{L_ST+48}
        s_waitcnt lgkmcnt(0)
        """)
        a(f"v_add_f32 v{vMean}, v{P}, v{P+2}")
        for k in range(2, 8): a(f"v_add_f32 v{vMean}, v{vMean}, v{P+2*k}")
        a(f"v_add_f32 v{vM2}, v{P+1}, v{P+3}")
        for k in range(2, 8): a(f"v_add_f32 v{vM2}, v{vM2}, v{P+2*k+1}")
        a(f"v_mul_f32 v{vMean}, 0x3e000000, v{vMean}")
        for k in range(8): a(f"v_sub_f32 v{P+2*k}, v{P+2*k}, v{vMean}")
        a(f"v_mul_f32 v{t0}, v{P}, v{P}")
        for k in range(1, 8): a(f"v_fmac_f32 v{t0}, v{P+2*k}, v{P+2*k}")
        a(f"v_fmac_f32 v{vM2}, 0x42800000, v{t0}")
        a(f"v_mul_f32 v{vM2}, 0x3b000000, v{vM2}")
        self.ln_finish(vM2, vMean, vRsd)
        for i in range(8): a(f"v_sub_f32 v{X8+i}, v{X8+i}, v{vMean}")
        self.round_bf16((X8, 8), T8)
        for i in range(8): a(f"v_mul_f32 v{X8+i}, v{X8+i}, v{vRsd}")
        self.round_bf16((X8, 8), T8)
        for i in range(8): a(f"v_mul_f32 v{X8+i}, v{X8+i}, v{CB+i}")
        self.round_bf16((X8, 8), T8)
        for i in range(8): a(f"v_add_f32 v{X8+i}, v{X8+i}, v{SB+i}")
        self.pack(A4, X8, 4)
        self.tile_mfma(A4, F, D)
        self.tile_write(D, T8, self.vWA, L_P1)
        a("s_waitcnt lgkmcnt(0)")
        a("s_barrier")
        a("s_cmp_ge_u32 s3, 4\ns_cbranch_scc1 L_end")
        self.stamp(6)
        self.tile_reduce16(P, self.vRA, L_P1)
        self.round1(P)
        a(f"""
        v_mov_b32_dpp v{t1}, v{P} row_shl:8 row_mask:0xf bank_mask:0xf bound_ctrl:0
        v_mul_f32 v{t0}, v{P}, v{P}
        v_mul_f32 v{t0}, 0x3d372713, v{t0}
        v_add_f32 v{t0}, 1.0, v{t0}
        v_mul_f32 v{t0}, v{t0}, v{P}
        v_mul_f32 v{t0}, 0xc0135761, v{t0}
        v_exp_f32 v{t0}, v{t0}
        v_add_f32 v{t0}, 1.0, v{t0}
        v_rcp_f32 v{t0}, v{t0}
        v_mul_f32 v{t0}, v{t0}, v{P}
        """)
        self.round1(t0)
        a(f"""
        v_mul_f32 v{t0}, v{t0}, v{t1}
        v_cvt_pk_bf16_f32 v{t0}, v{t0}, v{t0}
        s_lshl_b32 s6, s3, 6
        v_lshrrev_b32 v{t1}, 1, v{self.vPA}
        v_add_u32 v{t1}, s6, v{t1}
        s_mov_b32 exec_lo, 0x00ff00ff
        s_mov_b32 exec_hi, 0x00ff00ff
        ds_write_b16 v{t1}, v{t0} offset:{L_HH}
        s_mov_b64 exec, -1
        v_lshlrev_b32 v{t1}, 4, v{vKB}
        v_add_u32 v{t1}, s6, v{t1}
        s_waitcnt lgkmcnt(0)
        ds_read_b128 {self.vr(A4,4)}, v{t1} offset:{L_HH}
        s_lshl_b32 s6, s9, 11
        s_lshl_b32 s7, s3, 9
        s_add_u32 s6, s6, s7
        s_add_u32 s6, s6, {H5}
        v_lshlrev_b32 v{t1}, 5, v{vJ}
        v_add_u32 v{t1}, s6, v{t1}
        s_mov_b32 s62, 0x07060500
        s_mov_b32 s63, 0x07060501
        s_mov_b32 s64, 0x07060502
        s_mov_b32 s65, 0x07060503
        s_waitcnt lgkmcnt(0)
        """)
        self.tile_mfma(A4, FD, D)
        for c in range(8):
            a(f"v_perm_b32 v{T8+c}, v{D+4*c}, v{self.vT}, s{62+(c&3)}")
        a(f"""
        s_mov_b64 exec, 0xffff
        buffer_store_dwordx4 {self.vr(T8,4)}, v{t1}, s[44:47], 0 offen sc1
        buffer_store_dwordx4 {self.vr(T8+4,4)}, v{t1}, s[44:47], 0 offen offset:16 sc1
        s_mov_b64 exec, -1
        """)
        self.stamp(7)
        a("s_endpgm")

    def role_a(self):
        a = self.a; V = self.valloc
        vL, vKB, vJ = self.vL, self.vKB, self.vJ
        a.label("L_roleA")
        KL = V(32, 4); VL = V(32, 4); KA = V(32, 4); VB = V(32, 4); O = V(32, 4)
        QW = V(8, 4); QB = V(16, 4); S = V(8, 4); PA = V(4, 4); T4 = V(4, 4)
        vOff = V(); t0 = V(); t1 = V(); acc = V(); vH = V(); vM = V(); vLs = V()
        WA = V(4); RA = V(4)
        KV0 = (65536-4096)*256
        a(f"""
        s_sub_u32 s8, s5, 16              ; ck
        s_lshl_b32 s6, s4, 24
        s_lshl_b32 s7, s8, 16
        s_add_u32 s6, s6, s7
        s_lshl_b32 s7, s3, 13
        s_add_u32 s6, s6, s7
        s_add_u32 s6, s6, {KV0 + 4096}
        v_lshlrev_b32 v{vOff}, 4, v{vL}
        v_add_u32 v{vOff}, s6, v{vOff}
        """)
        for e in range(8):
            a(f"global_load_dwordx4 {self.vr(KL+4*e,4)}, v{vOff}, s[18:19] offset:{(e-4)*1024} nt")
        a(f"""
        v_lshlrev_b32 v{vOff}, 10, v{vKB}
        v_lshl_add_u32 v{vOff}, v{vJ}, 4, v{vOff}
        v_add_u32 v{vOff}, s6, v{vOff}
        """)
        for e in range(8):
            off = (e if e < 4 else 16 + (e-4))*256 - 4096
            a(f"global_load_dwordx4 {self.vr(VL+4*e,4)}, v{vOff}, s[20:21] offset:{off} nt")
        a(f"""
        s_lshl_b32 s7, s3, 13
        s_add_u32 s7, s7, {L_KT}
        v_xor_b32 v{t0}, v{vJ}, v{vKB}
        v_lshlrev_b32 v{t1}, 8, v{vKB}
        v_add_u32 v{t1}, s7, v{t1}
        v_lshlrev_b32 v{acc}, 8, v{vJ}
        v_add_u32 v{acc}, s7, v{acc}                    ; wbase + i*256
        """)
        for m in range(4):
            a(f"v_xor_b32 v{vH}, {4*m}, v{t0}")
            a(f"v_lshl_add_u32 v{WA+m}, v{vH}, 4, v{t1}")
            a(f"v_lshl_add_u32 v{RA+m}, v{vH}, 4, v{acc}")
        a(f"""
        v_and_b32 v{t0}, 3, v{vJ}
        v_lshrrev_b32 v{t1}, 2, v{vJ}
        v_lshlrev_b32 v{vH}, 9, v{t0}
        v_lshl_add_u32 v{vH}, v{t1}, 7, v{vH}
        v_lshl_add_u32 v{vH}, v{vKB}, 5, v{vH}
        s_lshl_b32 s6, s4, 11
        s_add_u32 s6, s6, {H2}
        v_add_u32 v{vH}, s6, v{vH}
        """)
        for e in range(8):
            a(f"s_waitcnt vmcnt({15-e})")
            if e == 0: self.tag_ready()
            a(f"ds_write_b128 v{WA+(e&3)}, {self.vr(KL+4*e,4)} offset:{e*1024}")
        a("s_waitcnt lgkmcnt(0)")
        for T in range(2):
            for m in range(4):
                a(f"ds_read_b128 {self.vr(KA+(T*4+m)*4,4)}, v{RA+m} offset:{T*4096}")
        self.stamp(1)
        self.tile_perm(VL, VB, waits=lambda d: a(f"s_waitcnt vmcnt({6-2*d + (1 if self.stamps else 0)})"))
        self.stamp(2)
        self.poll([(QW, vH, 0), (QW+4, vH, 16)], t0, t1, acc, dual=True)
        self.stamp(3)
        for d in range(4):
            a(f"v_perm_b32 v{QB+d}, v{QW+2*d+1}, v{QW+2*d}, s51")
        for m in range(1, 4):
            for d in range(4):
                a(f"v_mov_b32_dpp v{QB+4*m+d}, v{QB+d} row_shl:{4*m} row_mask:0xf bank_mask:0xf bound_ctrl:0")
        a("s_waitcnt lgkmcnt(0)")
        for m in range(4):
            for T in range(2):
                c = "0" if m == 0 else self.vr(S+4*T, 4)
                a(f"v_mfma_f32_16x16x32_bf16 {self.vr(S+4*T,4)}, {self.vr(KA+(T*4+m)*4,4)}, {self.vr(QB+4*m,4)}, {c}")
        self.round_bf16((S, 8), T4)
        for i in range(8): a(f"v_mul_f32 v{S+i}, 0x3db504f3, v{S+i}")
        self.round_bf16((S, 8), T4)
        a(f"""
        v_max3_f32 v{vM}, v{S}, v{S+1}, v{S+2}
        v_max3_f32 v{t0}, v{S+3}, v{S+4}, v{S+5}
        v_max3_f32 v{vM}, v{vM}, v{S+6}, v{S+7}
        v_max_f32 v{vM}, v{vM}, v{t0}
        """)
        self.xrow_all(vM, t0, op="v_max_f32")
        for i in range(8): a(f"v_sub_f32 v{S+i}, v{S+i}, v{vM}")
        for i in range(8): a(f"v_mul_f32 v{S+i}, {LOG2E}, v{S+i}")
        for i in range(8): a(f"v_exp_f32 v{S+i}, v{S+i}")
        self.pack(PA, S, 4)
        for c in range(8):
            a(f"v_mfma_f32_16x16x32_bf16 {self.vr(O+4*c,4)}, {self.vr(VB+4*c,4)}, {self.vr(PA,4)}, 0")
        a(f"v_add_f32 v{vLs}, v{S}, v{S+1}")
        for i in range(2, 8): a(f"v_add_f32 v{vLs}, v{vLs}, v{S+i}")
        self.xrow_all(vLs, t0)
        a(f"""
        v_lshl_add_u32 v{t0}, v{vJ}, 2, v{vKB}
        v_lshlrev_b32 v{t0}, 7, v{t0}
        s_lshl_b32 s6, s3, 11
        v_add_u32 v{t0}, s6, v{t0}
        v_lshlrev_b32 v{t1}, 5, v{vJ}
        s_lshl_b32 s6, s3, 2
        v_add_u32 v{t1}, s6, v{t1}
        s_mov_b32 exec_lo, 0x000f000f
        s_mov_b32 exec_hi, 0x000f000f
        ds_write_b32 v{t1}, v{vM} offset:{L_ML}
        ds_write_b32 v{t1}, v{vLs} offset:{L_ML+128}
        """)
        for c in range(8):
            a(f"ds_write_b128 v{t0}, {self.vr(O+4*c,4)} offset:{L_OB + c*16}")
        a(f"""
        s_mov_b64 exec, -1
        v_lshlrev_b32 v{t0}, 12, v{vKB}
        v_lshl_add_u32 v{t0}, v{vJ}, 4, v{t0}
        s_lshl_b32 s6, s3, 8
        v_add_u32 v{t0}, s6, v{t0}
        s_lshr_b32 s7, s3, 1
        s_lshl_b32 s7, s7, 5
        v_mov_b32 v{t1}, s7
        v_lshl_add_u32 v{acc}, v{vKB}, 3, v{t1}
        s_waitcnt lgkmcnt(0)
        s_barrier
        """)
        self.stamp(4)
        M8 = KL; M2 = KL+8; L2 = KL+10; O0 = KL+12; O1 = KL+16
        a(f"""
        ds_read_b128 {self.vr(M8,4)}, v{t1} offset:{L_ML}
        ds_read_b128 {self.vr(M8+4,4)}, v{t1} offset:{L_ML+16}
        ds_read_b64 {self.vr(M2,2)}, v{acc} offset:{L_ML}
        ds_read_b64 {self.vr(L2,2)}, v{acc} offset:{L_ML+128}
        ds_read_b128 {self.vr(O0,4)}, v{t0} offset:{L_OB}
        ds_read_b128 {self.vr(O1,4)}, v{t0} offset:{L_OB+2048}
        s_lshl_b32 s6, s4, 4
        s_add_u32 s6, s6, s8
        s_lshl_b32 s6, s6, 11
        s_lshl_b32 s7, s3, 8
        s_add_u32 s6, s6, s7
        s_add_u32 s6, s6, {H3}
        v_lshlrev_b32 v{vH}, 2, v{vKB}
        v_lshl_add_u32 v{vH}, v{vJ}, 4, v{vH}
        v_add_u32 v{vH}, s6, v{vH}
        s_waitcnt lgkmcnt(3)
        v_max3_f32 v{vM}, v{M8}, v{M8+1}, v{M8+2}
        v_max3_f32 v{t0}, v{M8+3}, v{M8+4}, v{M8+5}
        v_max3_f32 v{vM}, v{vM}, v{M8+6}, v{M8+7}
        v_max_f32 v{vM}, v{vM}, v{t0}
        v_sub_f32 v{M2}, v{M2}, v{vM}
        v_sub_f32 v{M2+1}, v{M2+1}, v{vM}
        v_mul_f32 v{M2}, {LOG2E}, v{M2}
        v_mul_f32 v{M2+1}, {LOG2E}, v{M2+1}
        v_exp_f32 v{M2}, v{M2}
        v_exp_f32 v{M2+1}, v{M2+1}
        s_waitcnt lgkmcnt(0)
        """)
        for i in range(4): a(f"v_mul_f32 v{O0+i}, v{M2}, v{O0+i}")
        for i in range(4): a(f"v_fmac_f32 v{O0+i}, v{M2+1}, v{O1+i}")
        self.xrow_scatter4(O0)
        self.publish_word(O0, vH, 0, dual=True)
        a(f"""
        v_mul_f32 v{vLs}, v{M2}, v{L2}
        v_fmac_f32 v{vLs}, v{M2+1}, v{L2+1}
        """)
        self.xrow_all(vLs, t0)
        Lml = a.newlabel("L_noml")
        a(f"""
        s_bitcmp1_b32 s3, 0
        s_cbranch_scc1 {Lml}
        s_mov_b32 vcc_lo, 0xffff0000
        s_mov_b32 vcc_hi, 0xffff0000
        v_cndmask_b32 v{vM}, v{vM}, v{vLs}, vcc
        s_lshl_b32 s6, s4, 2
        s_lshr_b32 s7, s3, 1
        s_add_u32 s6, s6, s7
        s_lshl_b32 s6, s6, 4
        s_add_u32 s6, s6, s8
        s_lshl_b32 s6, s6, 4
        s_add_u32 s6, s6, {H3ML}
        v_lshlrev_b32 v{t0}, 2, v{vKB}
        v_add_u32 v{t0}, s6, v{t0}
        s_mov_b32 exec_lo, 0x00010001
        s_mov_b32 exec_hi, 0x00010001
        """)
        self.publish_word(vM, t0, 0, dual=True)
        a("s_mov_b64 exec, -1")
        a.flush_hazards()
        a.label(Lml)
        self.stamp(5)
        a(f"""
        s_cmp_ge_u32 s8, 2
        s_cbranch_scc1 L_end
        s_cmp_ge_u32 s3, 1
        s_cbranch_scc1 L_end
        s_lshl_b32 s9, s4, 1
        s_add_u32 s9, s9, s8              ; psi
        """)
        P8 = V(); C4 = V(); X1 = V(); G4 = VL; H = KA; GBall = VB
        a(f"""
        v_lshrrev_b32 v{P8}, 3, v{vL}                 ; p8
        v_and_b32 v{C4}, 7, v{vL}                     ; c4
        s_lshl_b32 s6, s9, 6
        v_lshl_add_u32 v{t0}, v{C4}, 2, v{vKB}
        v_lshlrev_b32 v{vOff}, 1, v{t0}
        v_add_u32 v{vOff}, s6, v{vOff}
        global_load_ushort v{X1}, v{vOff}, s[16:17]
        s_lshl_b32 s6, s9, 7
        s_add_u32 s7, s6, {MODR}
        v_lshlrev_b32 v{vH}, 4, v{C4}
        v_add_u32 v{vM}, s7, v{vH}
        v_add_u32 v{vLs}, {3*2048}, v{vM}
        v_lshlrev_b32 v{S}, 5, v{vL}
        v_add_u32 v{S}, {MODR + 3*2048}, v{S}
        """)
        self.poll([(G4, vM, 0), (G4+4, vLs, 0), (GBall, S, 0), (GBall+4, S, 16)], t0, t1, acc)
        a(f"""
        v_cmp_eq_u32 vcc, 1, v{vKB}
        v_cndmask_b32 v{G4}, v{G4}, v{G4+1}, vcc
        v_cndmask_b32 v{G4+4}, v{G4+4}, v{G4+5}, vcc
        v_cmp_eq_u32 vcc, 2, v{vKB}
        v_cndmask_b32 v{G4}, v{G4}, v{G4+2}, vcc
        v_cndmask_b32 v{G4+4}, v{G4+4}, v{G4+6}, vcc
        v_cmp_eq_u32 vcc, 3, v{vKB}
        v_cndmask_b32 v{G4}, v{G4}, v{G4+3}, vcc
        v_cndmask_b32 v{G4+4}, v{G4+4}, v{G4+7}, vcc
        v_and_b32 v{G4}, 0xffff0000, v{G4}
        v_and_b32 v{G4+4}, 0xffff0000, v{G4+4}
        v_lshlrev_b32 v{X1}, 16, v{X1}
        s_add_u32 s7, s6, {H4}
        v_lshl_add_u32 v{vH}, v{P8}, 11, v{vH}
        v_add_u32 v{vM}, s7, v{vH}
        s_add_u32 s7, s6, {H5}
        v_add_u32 v{vH}, s7, v{vH}
        """)
        self.poll([(H, vM, 0)], t0, t1, acc)
        self.xrow_scatter4(H)
        a(f"v_add_f32_dpp v{H}, v{H}, v{H} row_ror:8 row_mask:0xf bank_mask:0xf")
        self.round1(H)
        a(f"v_mul_f32 v{H}, v{H}, v{G4}")
        self.round1(H)
        a(f"v_add_f32 v{X1}, v{X1}, v{H}")
        self.round1(X1)
        AD = [vH] + [O+k for k in range(6)]
        for t in range(1, 7):
            a(f"v_add_u32 v{AD[t]}, {t*16384}, v{vH}")
        self.stamp(6)
        self.poll([(H+4*t, AD[t], 0) for t in range(7)], t0, t1, acc)
        self.stamp(7)
        for t in range(1, 7):
            a(f"v_pk_add_f32 {self.vr(H,2)}, {self.vr(H,2)}, {self.vr(H+4*t,2)}")
            a(f"v_pk_add_f32 {self.vr(H+2,2)}, {self.vr(H+2,2)}, {self.vr(H+4*t+2,2)}")
        self.xrow_scatter4(H)
        a(f"v_add_f32_dpp v{H}, v{H}, v{H} row_ror:8 row_mask:0xf bank_mask:0xf")
        self.round1(H)
        a(f"v_mul_f32 v{H}, v{H}, v{G4+4}")
        self.round1(H)
        a(f"""
        v_add_f32 v{X1}, v{X1}, v{H}
        v_cvt_pk_bf16_f32 v{X1}, v{X1}, v{X1}
        s_mov_b32 exec_lo, 0x00ff00ff
        s_mov_b32 exec_hi, 0x00ff00ff
        global_store_short v{vOff}, v{X1}, s[38:39]
        s_mov_b64 exec, -1
        """)
        self.stamp(8)
        a(f"""
        s_cmp_lg_u32 s9, 0
        s_cbranch_scc1 L_end
        v_mov_b32 v{t0}, 0
        s_mov_b64 exec, 1
        buffer_store_dword v{self.vT}, v{t0}, s[44:47], 0 offen offset:{EPOCH} sc1
        s_endpgm
        """)

    def text(self):
        hdr = open(os.path.join(os.path.dirname(os.path.abspath(__file__)), "header.txt")).read()
        nv = (self.maxv + 7)//8*8
        return hdr + f"""; @launch grid=(256,1,1) block=(512,1,1) lds={LDS_BYTES}
.amdgcn_target "amdgcn-amd-amdhsa--gfx950"
.text
.globl {KNAME}
.p2align 8
.type {KNAME},@function
{KNAME}:
""" + self.a.text() + f""".section .rodata,"a"
.p2align 6
.amdhsa_kernel {KNAME}
  .amdhsa_next_free_vgpr {nv}
  .amdhsa_next_free_sgpr 80
  .amdhsa_accum_offset {nv}
  .amdhsa_group_segment_fixed_size 0
  .amdhsa_kernarg_size 112
  .amdhsa_user_sgpr_count 2
  .amdhsa_user_sgpr_kernarg_segment_ptr 1
  .amdhsa_system_sgpr_workgroup_id_x 1
  .amdhsa_float_denorm_mode_32 3
.end_amdhsa_kernel
"""

if __name__ == "__main__":
    import argparse
    ap = argparse.ArgumentParser()
    ap.add_argument("-o", default="adaLN_cond__sliding_block_cached__glu_gated_geglu__decode.s")
    ap.add_argument("--stamps", action="store_true")
    ap.add_argument("--trigger", action="store_true")
    args = ap.parse_args()
    g = G(stamps=args.stamps, ffn_trigger=args.trigger)
    g.build()
    open(args.o, "w").write(g.text())
    print("wrote", args.o, "vgprs", g.maxv)
```
